```python
import torch

def _softmax(x, axis=-1):
    return torch.softmax(x, dim=axis)
def _gelu(x):
    return torch.nn.functional.gelu(x, approximate="tanh")
def _silu(x):
    return torch.nn.functional.silu(x)
def _sigmoid(x):
    return torch.sigmoid(x)
def _layernorm(x, axis=-1, eps=1e-5):
    m = x.mean(dim=axis, keepdim=True)
    v = x.var(dim=axis, keepdim=True, unbiased=False)
    return (x - m) / torch.sqrt(v + eps)
def _scatter_add(tgt, idx, src, axis=0):
    return tgt.clone().index_add_(axis, idx, src)
def _segment_sum(src, seg, n):
    out = torch.zeros((n,) + src.shape[1:], dtype=src.dtype)
    return out.index_add_(0, seg, src)
def _pad(x, pw):
    flat = tuple(v for pair in reversed(pw) for v in pair)
    return torch.nn.functional.pad(x, flat)

kernel_name = 'standalone__linear_kernel_rfa__decode'

def setup_inputs():

    _w = (lambda a: (lambda t: t.to(torch.bfloat16) if t.is_floating_point() else t)(torch.as_tensor(a)))
    B, H, Sq, Sk, D, M = 1, 32, 1, 32768, 128, 8
    return {
        "q": _w((lambda *s: torch.randn(*s, dtype=torch.bfloat16) * 0.05)(B, H, Sq, D)),
        "k": _w((lambda *s: torch.randn(*s, dtype=torch.bfloat16) * 0.4)(B, H, Sk, D)),
        "v": _w((lambda *s: torch.randn(*s, dtype=torch.bfloat16) * 0.4)(B, H, Sk, D)),
        "omega": _w((lambda *s: torch.randn(*s, dtype=torch.bfloat16) * 0.8)(M, D)),
    }

def reference(q, k, v, omega):
    d = q.shape[-1]
    m = omega.shape[0]
    scale = float(d) ** -0.25
    qs = q * scale
    ks = k * scale
    q_proj = torch.einsum("bhsd,md->bhsm", qs, omega)
    k_proj = torch.einsum("bhsd,md->bhsm", ks, omega)
    q_sq = 0.5 * torch.einsum("bhsd,bhsd->bhs", qs, qs)[..., None]
    k_sq = 0.5 * torch.einsum("bhsd,bhsd->bhs", ks, ks)[..., None]
    inv_sqrt_m = float(m) ** -0.5
    phi_q = torch.exp(q_proj - q_sq) * inv_sqrt_m + 1e-6
    phi_k = torch.exp(k_proj - k_sq) * inv_sqrt_m + 1e-6
    kv = torch.einsum("bhsm,bhsd->bhmd", phi_k, v)
    z  = torch.einsum("bhsm->bhm", phi_k)
    num = torch.einsum("bhqm,bhmd->bhqd", phi_q, kv)
    den = torch.einsum("bhqm,bhm->bhq", phi_q, z)[..., None] + 1e-6
    return num / den
```

```python
import sys, math
from asmlib import *

KNAME = "standalone__linear_kernel_rfa__decode_kernel"

def f32hex(x):
    import struct
    return "0x%08x" % struct.unpack("<I", struct.pack("<f", x))[0]

def gen(name=KNAME, W=4, D=3, pol="nt", mapping="wg", stamp=0):
    a = Asm()
    NWG = 256
    H = 32
    SUBS = NWG // H
    ROWS = 32
    TILEB = ROWS * 256
    TILES_HEAD = 32768 // ROWS
    NT = TILES_HEAD // (SUBS * W)
    scale = 128.0 ** -0.25
    c1 = -0.5 * scale
    c2 = scale * math.log2(math.e)
    ism = 8.0 ** -0.5
    vLANE = 0; vKOFF = 1; vVOFF = 2; vCB = 3
    vS0 = 4; vS1 = 5; vTMP = 6; vTMP2 = 7
    vD0 = 8; vD1 = 12; vP = 16; vT0 = 20; vT1 = 24; vPQ = 28
    vQ = 32
    BUF = 48
    def Kr(b, u, q): return BUF + b * 64 + (u * 4 + q) * 4
    def Vr(b, t): return BUF + b * 64 + 32 + t * 4
    NV = BUF + D * 64
    assert NV <= 256
    ACCOFF = (NV + 3) // 4 * 4
    aACC = 0
    aZ = 32
    aOM = 36
    aONE = 52
    NA = 56
    def vr(r, n=4): return f"v[{r}:{r+n-1}]"
    def ar(r, n=4): return f"a[{r}:{r+n-1}]"
    L = 16
    sWAVE = 3
    sK = 20; sV = 24; sX = 28
    sOFF = 32; sOFF2 = 33; sCNT = 34; sHEAD = 35; sSUB = 36; sSEL_LO = 37; sSEL_HI = 38
    sC2 = 39; sISM = 40; sEPS = 41; sC1 = 42; sTMP = 43; sREM = 44
    a(kernel_header(name))
    a(f"""  ; ---- uniform exit for workgroups past the data ----
  s_cmp_ge_u32 s2, {NWG}
  s_cbranch_scc1 {name}_done
  s_load_dwordx8 s[4:11], s[0:1], 0       ; q, k, v, omega
  s_load_dwordx4 s[12:15], s[0:1], 32
  s_load_dwordx2 s[16:17], s[0:1], 48     ; ws
  v_lshrrev_b32 v{vTMP}, 6, v0
  v_and_b32 v{vLANE}, 63, v0
  s_lshr_b32 s{sHEAD}, s2, 3              ; head
  v_readfirstlane_b32 s{sWAVE}, v{vTMP}
  s_and_b32 s{sSUB}, s2, 7                ; slice of the head
  v_lshlrev_b32 v{vVOFF}, 4, v{vLANE}
  v_and_b32 v{vTMP}, 3, v{vLANE}
  v_lshlrev_b32 v{vTMP}, 10, v{vTMP}      ; (i&3)*4*256
  v_bfe_u32 v{vTMP2}, v{vLANE}, 2, 2
  v_lshlrev_b32 v{vTMP2}, 8, v{vTMP2}     ; (i>>2)*256
  v_add_u32 v{vKOFF}, v{vTMP}, v{vTMP2}
  v_lshrrev_b32 v{vTMP}, 4, v{vLANE}
  v_lshlrev_b32 v{vTMP}, 4, v{vTMP}       ; g*16
  v_add_u32 v{vKOFF}, v{vKOFF}, v{vTMP}
  v_and_b32 v{vTMP2}, 15, v{vLANE}
  v_lshlrev_b32 v{vTMP2}, 8, v{vTMP2}
  v_add_u32 v{vTMP2}, v{vTMP2}, v{vTMP}
  s_mov_b32 s{sSEL_LO}, 0x05040100
  s_mov_b32 s{sSEL_HI}, 0x07060302
  s_mov_b32 s{sC2}, {f32hex(c2)}
  s_mov_b32 s{sISM}, {f32hex(ism)}
  s_mov_b32 s{sEPS}, {f32hex(1e-6)}
  s_mov_b32 s{sC1}, {f32hex(c1)}
  v_mov_b32 v{vCB}, s{sC1}
""")
    if mapping == "wg":
        a(f"  s_mul_i32 s{sOFF}, s{sSUB}, {NT*W*TILEB}")
        a(f"  s_mul_i32 s{sTMP}, s{sWAVE}, {TILEB}")
        a(f"  s_add_u32 s{sOFF}, s{sOFF}, s{sTMP}")
        STEP = W * TILEB
    elif mapping == "head":
        a(f"  s_mul_i32 s{sOFF}, s{sSUB}, {W*TILEB}")
        a(f"  s_mul_i32 s{sTMP}, s{sWAVE}, {TILEB}")
        a(f"  s_add_u32 s{sOFF}, s{sOFF}, s{sTMP}")
        STEP = SUBS * W * TILEB
    else:
        raise Exception(mapping)
    a(f"""  s_add_u32 s{sOFF2}, s{sOFF}, 4096
  s_lshl_b32 s{sTMP}, s{sHEAD}, 23        ; head * 8 MiB
  s_waitcnt lgkmcnt(0)
  s_lshl_b32 s18, s{sHEAD}, 8
  s_add_u32 s{sX}, s4, s18
  s_addc_u32 s{sX+1}, s5, 0
  s_and_b32 s{sX+1}, s{sX+1}, 0xffff
  s_mov_b32 s{sX+2}, 256
  s_mov_b32 s{sX+3}, 0x20000
  s_mov_b32 s48, s10
  s_and_b32 s49, s11, 0xffff
  s_mov_b32 s50, 2048
  s_mov_b32 s51, 0x20000
  ; K, V SRDs (one head each)
  s_add_u32 s{sK}, s6, s{sTMP}
  s_addc_u32 s{sK+1}, s7, 0
  s_and_b32 s{sK+1}, s{sK+1}, 0xffff
  s_mov_b32 s{sK+2}, 0x800000
  s_mov_b32 s{sK+3}, 0x20000
  s_add_u32 s{sV}, s8, s{sTMP}
  s_addc_u32 s{sV+1}, s9, 0
  s_and_b32 s{sV+1}, s{sV+1}, 0xffff
  s_mov_b32 s{sV+2}, 0x800000
  s_mov_b32 s{sV+3}, 0x20000
""")
    for q in range(4):
        a(f"  buffer_load_dwordx4 {vr(vQ+4*q)}, v{vTMP}, s[{sX}:{sX+3}], 0 offen offset:{q*64}")
    for q in range(4):
        a(f"  buffer_load_dwordx4 {ar(aOM+4*q)}, v{vTMP2}, s[48:51], 0 offen offset:{q*64}")
    def loadK(b):
        for u in range(2):
            for q in range(4):
                so = sOFF if u == 0 else sOFF2
                a(f"  buffer_load_dwordx4 {vr(Kr(b,u,q))}, v{vKOFF}, s[{sK}:{sK+3}], s{so} offen offset:{q*64} {pol}")
    def loadV(b):
        for t in range(8):
            so = sOFF if t < 4 else sOFF2
            a(f"  buffer_load_dwordx4 {vr(Vr(b,t))}, v{vVOFF}, s[{sV}:{sV+3}], s{so} offen offset:{(t%4)*1024} {pol}")
    def advance():
        a(f"  s_add_u32 s{sOFF}, s{sOFF}, {STEP}")
        a(f"  s_add_u32 s{sOFF2}, s{sOFF2}, {STEP}")
    for b in range(D):
        loadK(b); loadV(b); advance()
    for i in range(36):
        a(f"  v_accvgpr_write_b32 a{aACC+i}, 0")
    a(f"  v_mov_b32 v{vS0}, 0x3f803f80")
    for i in range(4):
        a(f"  v_accvgpr_write_b32 a{aONE+i}, v{vS0}")
    a(f"  s_mov_b32 s{sCNT}, {NT}")
    a(f"  s_waitcnt vmcnt({D*L})")
    for q in range(4):
        c = "0" if q == 0 else vr(vD0)
        a(f"  v_mfma_f32_16x16x32_bf16 {vr(vD0)}, {ar(aOM+4*q)}, {vr(vQ+4*q)}, {c}")
        c = "0" if q == 0 else vr(vD1)
        a(f"  v_mfma_f32_16x16x32_bf16 {vr(vD1)}, {vr(vQ+4*q)}, {vr(vQ+4*q)}, {c}")
    a("  s_nop 7")
    a("  s_nop 1")
    for r in range(4):
        a(f"  v_fma_f32 v{vPQ+r}, v{vD1}, s{sC1}, v{vD0+r}")
    for r in range(4):
        a(f"  v_mul_f32 v{vPQ+r}, s{sC2}, v{vPQ+r}")
    for r in range(4):
        a(f"  v_exp_f32 v{vPQ+r}, v{vPQ+r}")
    a(f"  v_mov_b32 v{vTMP2}, s{sEPS}")
    a(f"  v_cmp_gt_u32 vcc, 32, v{vLANE}")
    for r in range(4):
        a(f"  v_fma_f32 v{vPQ+r}, v{vPQ+r}, s{sISM}, v{vTMP2}")
    for r in range(4):
        a(f"  v_cndmask_b32 v{vPQ+r}, 0, v{vPQ+r}, vcc")
    vEPS = vTMP2

    def step(b):
        a(f"  s_waitcnt vmcnt({D*L-8})")
        for q in range(4):
            for u in range(2):
                d = vD0 if u == 0 else vD1
                c = "0" if q == 0 else vr(d)
                a(f"  v_mfma_f32_16x16x32_bf16 {vr(d)}, {vr(Kr(b,u,q))}, {ar(aOM+4*q)}, {c}")
            for i in range(4):
                for u in range(2):
                    s = vS0 if u == 0 else vS1
                    c = "0" if (q == 0 and i == 0) else f"v{s}"
                    k = Kr(b,u,q) + i
                    a(f"  v_dot2_f32_bf16 v{s}, v{k}, v{k}, {c}")
        a(f"  s_cmp_gt_u32 s{sCNT}, {D}")
        a(f"  s_cselect_b32 s{sK+2}, 0x800000, 0")
        a(f"  s_cselect_b32 s{sV+2}, 0x800000, 0")
        a(f"  s_nop 0")
        a(f"  v_mfma_f32_16x16x4_f32 {vr(vD0)}, v{vS0}, v{vCB}, {vr(vD0)}")
        a(f"  v_mfma_f32_16x16x4_f32 {vr(vD1)}, v{vS1}, v{vCB}, {vr(vD1)}")
        loadK(b)
        a(f"  s_waitcnt vmcnt({(D-1)*L+8})")
        def perm(T, e):
            sel = sSEL_LO if e % 2 == 0 else sSEL_HI
            for p in range(4):
                a(f"  v_perm_b32 v{T+p}, v{Vr(b,2*p+1)+e//2}, v{Vr(b,2*p)+e//2}, s{sel}")
        perm(vT0, 0)
        perm(vT1, 1)
        for d in (vD0, vD1):
            for r in range(4):
                a(f"  v_mul_f32 v{d+r}, s{sC2}, v{d+r}")
        for d in (vD0, vD1):
            for r in range(4):
                a(f"  v_exp_f32 v{d+r}, v{d+r}")
        for d in (vD0, vD1):
            for r in range(4):
                a(f"  v_fma_f32 v{d+r}, v{d+r}, s{sISM}, v{vEPS}")
        a(f"  v_cvt_pk_bf16_f32 v{vP+0}, v{vD0+0}, v{vD0+1}")
        a(f"  v_cvt_pk_bf16_f32 v{vP+1}, v{vD0+2}, v{vD0+3}")
        a(f"  v_cvt_pk_bf16_f32 v{vP+2}, v{vD1+0}, v{vD1+1}")
        a(f"  v_cvt_pk_bf16_f32 v{vP+3}, v{vD1+2}, v{vD1+3}")
        a(f"  s_sub_u32 s{sCNT}, s{sCNT}, 1")
        a(f"  s_nop 0")
        def mf(e, T):
            a(f"  v_mfma_f32_16x16x32_bf16 {ar(aACC+4*e)}, {vr(vP)}, {vr(T)}, {ar(aACC+4*e)}")
        a(f"  v_mfma_f32_16x16x32_bf16 {ar(aZ)}, {vr(vP)}, {ar(aONE)}, {ar(aZ)}")
        mf(0, vT0); perm(vT0, 2)
        mf(1, vT1); perm(vT1, 3)
        mf(2, vT0); perm(vT0, 4)
        mf(3, vT1); perm(vT1, 5)
        mf(4, vT0); perm(vT0, 6)
        mf(5, vT1); perm(vT1, 7)
        mf(6, vT0)
        loadV(b)
        advance()
        mf(7, vT1)
        a(f"  s_cmp_eq_u32 s{sCNT}, 0")
        a(f"  s_cbranch_scc1 {name}_fin")

    a(f"{name}_loop:")
    for b in range(D):
        step(b)
    a(f"  s_branch {name}_loop")
    E = BUF
    a(f"{name}_fin:")
    a(f"  s_waitcnt vmcnt(0)")
    a(f"  s_nop 7")
    for e in range(8):
        for r in range(4):
            a(f"  v_accvgpr_read_b32 v{E+e*4+r}, a{aACC+e*4+r}")
    for r in range(4):
        a(f"  v_accvgpr_read_b32 v{E+32+r}, a{aZ+r}")
    T = E + 40
    for e in range(9):
        a(f"  v_mul_f32 v{T+e}, v{vPQ}, v{E+e*4}")
    for r in range(1, 4):
        for e in range(9):
            a(f"  v_fma_f32 v{T+e}, v{vPQ+r}, v{E+e*4+r}, v{T+e}")
    a(f"""  v_lshrrev_b32 v{vTMP}, 4, v{vLANE}
  s_lshl_b32 s{sTMP}, s{sWAVE}, 1
  v_add_u32 v{vTMP}, s{sTMP}, v{vTMP}      ; slot
  v_lshlrev_b32 v{vS0}, 9, v{vTMP}
  v_and_b32 v{vS1}, 15, v{vLANE}
  v_lshlrev_b32 v{vS1}, 5, v{vS1}
  v_add_u32 v{vS0}, v{vS0}, v{vS1}         ; slot*512 + j*32
  v_lshlrev_b32 v{vTMP}, 2, v{vTMP}
  v_add_u32 v{vTMP}, {W*2*512}, v{vTMP}
  v_cmp_gt_u32 vcc, 32, v{vLANE}
  s_and_saveexec_b64 s[46:47], vcc
  ds_write_b128 v{vS0}, {vr(T)}
  ds_write_b128 v{vS0}, {vr(T+4)} offset:16
  ds_write_b32 v{vTMP}, v{T+8}
  s_mov_b64 exec, s[46:47]
  s_waitcnt lgkmcnt(0)
  s_barrier
  s_cmp_lg_u32 s{sWAVE}, 0
  s_cbranch_scc1 {name}_done
  v_lshlrev_b32 v{vTMP}, 3, v{vLANE}""")
    NS = W * 2
    for s in range(NS):
        a(f"  ds_read_b64 {vr(E+2*s,2)}, v{vTMP} offset:{s*512}")
    a(f"  v_mov_b32 v{vS0}, {NS*512}")
    for s in range(0, NS, 4):
        a(f"  ds_read_b128 {vr(E+32+s)}, v{vS0} offset:{s*4}")
    a(f"  s_waitcnt lgkmcnt(0)")
    for s in range(1, NS):
        a(f"  v_add_f32 v{E}, v{E}, v{E+2*s}")
        a(f"  v_add_f32 v{E+1}, v{E+1}, v{E+2*s+1}")
        a(f"  v_add_f32 v{E+32}, v{E+32}, v{E+32+s}")
    a(f"  v_mov_b32 v{E+2}, v{E+32}")
    a(f"  v_mov_b32 v{E+3}, 0")
    a(f"""  s_mov_b32 s{sX}, s16
  s_and_b32 s{sX+1}, s17, 0xffff
  s_mov_b32 s{sX+2}, {NWG*1024}
  s_mov_b32 s{sX+3}, 0x20000
  s_lshl_b32 s{sTMP}, s2, 10
  buffer_store_dwordx4 {vr(E)}, v{vVOFF}, s[{sX}:{sX+3}], s{sTMP} offen sc1
  s_mov_b32 s48, s14
  s_and_b32 s49, s15, 0xffff
  s_mov_b32 s50, 256
  s_mov_b32 s51, 0x20000
  s_lshl_b32 s{sTMP}, s{sHEAD}, 2
  v_mov_b32 v{vS0}, 1
  v_mov_b32 v{vS1}, s{sTMP}
  s_waitcnt vmcnt(0)
  s_mov_b64 s[46:47], exec
  s_mov_b64 exec, 1
  buffer_atomic_add v{vS0}, v{vS1}, s[48:51], 0 offen sc0
  s_waitcnt vmcnt(0)
  v_readfirstlane_b32 s{sTMP}, v{vS0}
  s_mov_b64 exec, s[46:47]
  s_cmp_lg_u32 s{sTMP}, {SUBS-1}
  s_cbranch_scc1 {name}_done
  ; last arriver of this head: combine the {SUBS} partials
  s_lshl_b32 s{sTMP}, s{sHEAD}, {10+3}""")
    for s in range(SUBS):
        if s % 4 == 0 and s > 0:
            a(f"  s_add_u32 s{sTMP}, s{sTMP}, 4096")
        a(f"  buffer_load_dwordx4 {vr(E+4*s)}, v{vVOFF}, s[{sX}:{sX+3}], s{sTMP} offen offset:{(s%4)*1024} sc1")
    a(f"""  s_mov_b32 s48, s12
  s_and_b32 s49, s13, 0xffff
  s_mov_b32 s50, {H*256}
  s_mov_b32 s51, 0x20000
  s_lshl_b32 s{sTMP}, s{sHEAD}, 8
  v_lshlrev_b32 v{vTMP}, 2, v{vLANE}
  s_waitcnt vmcnt(0)""")
    for s in range(1, SUBS):
        for i in range(3):
            a(f"  v_add_f32 v{E+i}, v{E+i}, v{E+4*s+i}")
    a(f"""  v_add_f32 v{E+2}, s{sEPS}, v{E+2}
  v_rcp_f32 v{E+2}, v{E+2}
  s_nop 0
  v_mul_f32 v{E}, v{E}, v{E+2}
  v_mul_f32 v{E+1}, v{E+1}, v{E+2}
  v_cvt_pk_bf16_f32 v{E}, v{E}, v{E+1}
  buffer_store_dword v{E}, v{vTMP}, s[48:51], s{sTMP} offen
{name}_done:
  s_endpgm
""")
    a(kernel_desc(name, ACCOFF + NA, 64, ACCOFF))
    lds = W * 2 * 512 + 64
    return a.text(), ACCOFF + NA, lds

HEADER = """; Kernarg layout for this problem (56 bytes, ptrs only, base s[0:1]):
"""

if __name__ == "__main__":
    mode = sys.argv[1]
    if mode == "final":
        kw = eval(sys.argv[2]) if len(sys.argv) > 2 else {}
        outp = sys.argv[3] if len(sys.argv) > 3 else "../cdna_kernels/standalone__linear_kernel_rfa__decode.s"
        t, nv, lds = gen(**kw)
        W = kw.get('W', 4)
        s = HEADER + f"; @launch grid=(256,1,1) block=({W*64},1,1) lds={lds}\n" + '.amdgcn_target "amdgcn-amd-amdhsa--gfx950"\n' + t
        open(outp, "w").write(s)
        print("wrote", outp, "vgprs", nv, "lds", lds)
    else:
        variants = eval(open(sys.argv[2]).read())
        out = ['.amdgcn_target "amdgcn-amd-amdhsa--gfx950"']
        ks = []; spec = []
        for v in variants:
            name = "r_" + "_".join(f"{k}{str(x).replace(' ','')}" for k, x in v.items())
            t, nv, lds = gen(name=name, **v)
            out.append(t)
            W = v.get('W', 4)
            ks.append((name, nv, 64, W * 64))
            spec.append(f"{name} rfa.co 1 1 {name} 256 {W*64} {lds}")
        out.append(metadata(ks))
        open("rfa.s", "w").write("\n".join(out))
        assemble("rfa.s", "rfa.co")
        open("rfa.spec", "w").write("\n".join(spec) + "\n")
        print(len(spec), "variants")
```
